```python
import torch

def _softmax(x, axis=-1):
    return torch.softmax(x, dim=axis)
def _gelu(x):
    return torch.nn.functional.gelu(x, approximate="tanh")
def _silu(x):
    return torch.nn.functional.silu(x)
def _sigmoid(x):
    return torch.sigmoid(x)
def _layernorm(x, axis=-1, eps=1e-5):
    m = x.mean(dim=axis, keepdim=True)
    v = x.var(dim=axis, keepdim=True, unbiased=False)
    return (x - m) / torch.sqrt(v + eps)
def _scatter_add(tgt, idx, src, axis=0):
    return tgt.clone().index_add_(axis, idx, src)
def _segment_sum(src, seg, n):
    out = torch.zeros((n,) + src.shape[1:], dtype=src.dtype)
    return out.index_add_(0, seg, src)
def _pad(x, pw):
    flat = tuple(v for pair in reversed(pw) for v in pair)
    return torch.nn.functional.pad(x, flat)

kernel_name = 'standalone__mha_block_cached__near_ridge'

def setup_inputs():

    _w = (lambda a: (lambda t: t.to(torch.bfloat16) if t.is_floating_point() else t)(torch.as_tensor(a)))
    B, Sq, D = 8, 224, 576
    H, Sk, Dh = 32, 1024, 128
    return {
        "x": _w((lambda *s: torch.randn(*s, dtype=torch.bfloat16) * 0.8)(B, Sq, D)),
        "k_cache": _w((lambda *s: torch.randn(*s, dtype=torch.bfloat16) * 0.8)(B, H, Sk, Dh)),
        "v_cache": _w((lambda *s: torch.randn(*s, dtype=torch.bfloat16) * 0.05)(B, H, Sk, Dh)),
        "wq": _w((lambda *s: torch.randn(*s, dtype=torch.bfloat16) * 0.8)(D, H * Dh) * (D ** -0.5)),
        "wo": _w((lambda *s: torch.randn(*s, dtype=torch.bfloat16) * 0.05)(H * Dh, D) * ((H * Dh) ** -0.5)),
    }

def reference(x, k_cache, v_cache, wq, wo):
    B, Sq, D = x.shape
    H, Dh = 32, 128
    q = (lambda x, *d: x.permute(*d))((x @ wq).reshape(B, Sq, H, Dh), 0, 2, 1, 3)
    scores = torch.einsum("bhqd,bhkd->bhqk", q, k_cache) * (Dh ** -0.5)
    p = _softmax(scores, axis=-1)
    o = torch.einsum("bhqk,bhkd->bhqd", p, v_cache)
    return (lambda x, *d: x.permute(*d))(o, 0, 2, 1, 3).reshape(B, Sq, H * Dh) @ wo
```

```python
import re

def R(f, n, cnt=1):
    return f"{f}{n}" if cnt == 1 else f"{f}[{n}:{n+cnt-1}]"

def regs(f, n, cnt=1):
    return [f"{f}{i}" for i in range(n, n + cnt)]

class Ins:
    __slots__ = ("text", "kind", "rd", "wr", "tag", "wait_tags", "pre_lg", "pre_vm", "pre_nop", "meta", "srcc", "drain_lg", "cost")
    def __init__(self, text, kind, rd=(), wr=(), tag=None, wait_tags=None, srcc=None, drain_lg=False, cost=4):
        self.text = text; self.kind = kind; self.rd = list(rd); self.wr = list(wr)
        self.tag = tag; self.wait_tags = wait_tags; self.pre_lg = None; self.pre_vm = None; self.pre_nop = 0
        self.meta = None; self.srcc = srcc; self.drain_lg = drain_lg; self.cost = cost
    def __repr__(self): return self.text

def opnd(x):
    if isinstance(x, tuple):
        f, n, c = x if len(x) == 3 else (x[0], x[1], 1)
        return R(f, n, c), regs(f, n, c)
    if isinstance(x, str):
        if x in ("vcc", "m0", "exec", "scc"): return x, [x]
        return x, []
    if isinstance(x, int):
        return (str(x) if -16 <= x <= 64 else hex(x & 0xffffffff)), []
    if isinstance(x, float):
        return repr(x), []
    raise ValueError(x)

def V(n, c=1): return ("v", n, c)
def A(n, c=1): return ("a", n, c)
def S(n, c=1): return ("s", n, c)

TRANS = ("v_exp_f32", "v_log_f32", "v_rcp_f32", "v_rsq_f32", "v_sqrt_f32")

def valu(op, dst, *srcs, extra_rd=(), extra_wr=(), mods=""):
    dt, dr = opnd(dst)
    ts, rs = [], []
    for s in srcs:
        t, r = opnd(s); ts.append(t); rs += r
    kind = "trans" if op in TRANS else "valu"
    if op.startswith("v_permlane"): kind = "permlane"
    text = f"{op} {dt}" + "".join(", " + t for t in ts) + (" " + mods if mods else "")
    wr = dr + list(extra_wr)
    rd = rs + list(extra_rd)
    if op.startswith("v_permlane"):
        rd = rd + dr; wr = wr + rs
    return Ins(text, kind, rd, wr, cost=8 if kind == "trans" else 4)

def vcmp(op, dst, a, b):
    return valu(op, dst, a, b)

def salu(op, dst, *srcs, scc_wr=False, scc_rd=False):
    ts, rs = [], []
    if dst is None:
        dt, dr = None, []
    else:
        dt, dr = opnd(dst)
    for s in srcs:
        t, r = opnd(s); ts.append(t); rs += r
    parts = ([dt] if dt is not None else []) + ts
    text = op + " " + ", ".join(parts)
    return Ins(text, "salu", rs, dr)

def mfma(d, a, b, c):
    dt, dr = opnd(d); at, ar = opnd(a); bt, br = opnd(b); ct, cr = opnd(c)
    i = Ins(f"v_mfma_f32_32x32x16_bf16 {dt}, {at}, {bt}, {ct}", "mfma", ar + br + cr, dr, cost=8)
    i.srcc = cr
    i.meta = (ar + br, tuple(dr), tuple(cr))
    return i

def ds_read(op, dst, addr, off=0):
    dt, dr = opnd(dst); at, ar = opnd(addr)
    assert 0 <= off < 65536, off
    return Ins(f"{op} {dt}, {at}" + (f" offset:{off}" if off else ""), "dsrd", ar, dr)

def ds_b128(dst, addr, off=0): return ds_read("ds_read_b128", dst, addr, off)
def ds_tr(dst, addr, off=0): return ds_read("ds_read_b64_tr_b16", dst, addr, off)

def ds_write(op, addr, src, off=0):
    at, ar = opnd(addr); st, sr = opnd(src)
    return Ins(f"{op} {at}, {st}" + (f" offset:{off}" if off else ""), "dswr", ar + sr, [])

def dma(voff, srd, soff, imm=0, nt=False, tag=None, flags=""):
    vt, vr = opnd(voff); st, sr = opnd(srd); ot, orr = opnd(soff)
    assert 0 <= imm < 4096
    t = f"buffer_load_dwordx4 {vt}, {st}, {ot} offen" + (f" offset:{imm}" if imm else "") + (" nt" if nt else "") + (" " + flags if flags else "") + " lds"
    return Ins(t, "dma", vr + sr + orr + ["m0"], [], tag=tag)

def bload(op, dst, voff, srd, soff, imm=0, flags="", tag=None):
    dt, dr = opnd(dst); vt, vr = opnd(voff); st, sr = opnd(srd); ot, orr = opnd(soff)
    assert 0 <= imm < 4096
    t = f"{op} {dt}, {vt}, {st}, {ot} offen" + (f" offset:{imm}" if imm else "") + (" " + flags if flags else "")
    return Ins(t, "vmld", vr + sr + orr, dr, tag=tag)

def bstore(op, src, voff, srd, soff, imm=0, flags="", tag=None):
    dt, dr = opnd(src); vt, vr = opnd(voff); st, sr = opnd(srd); ot, orr = opnd(soff)
    assert 0 <= imm < 4096
    t = f"{op} {dt}, {vt}, {st}, {ot} offen" + (f" offset:{imm}" if imm else "") + (" " + flags if flags else "")
    return Ins(t, "vmst", vr + sr + orr + dr, [], tag=tag)

def barrier(wait_tags=None, drain=True):
    return Ins("s_barrier", "barrier", wait_tags=wait_tags, drain_lg=drain)

def waittag(tags):
    return Ins("", "waitonly", wait_tags=tags)

def raw(text, kind="salu", rd=(), wr=()):
    return Ins(text, kind, rd, wr)

def label(name):
    return Ins(name + ":", "label")

def nop(n):
    i = Ins(f"s_nop {n}", "nop"); i.meta = n + 1
    return i

def marker(name):
    i = Ins("", "marker"); i.meta = name
    return i

VALUISH = ("valu", "trans", "permlane")

def analyze(stream, verbose=False):
    pos = 0
    valu_w = {}; trans_w = {}; mfma_w = {}; srcc_r = {}; sgpr_vw = {}; m0_w = -100; store_rd = {}
    lg_q = []
    vm_q = []
    lg_done = 0; vm_done = 0
    tag_last = {}
    nopcount = 0
    mf_ord = 0
    mf_lastpos = -1000
    for I in stream:
        k = I.kind
        if k in ("label", "marker"):
            continue
        need_lg = None; need_vm = None
        touched = set(I.rd) | set(I.wr)
        for idx in range(len(lg_q) - 1, lg_done - 1, -1):
            if touched & lg_q[idx]:
                need_lg = len(lg_q) - 1 - idx; lg_done = idx + 1; break
        if I.drain_lg and lg_done < len(lg_q):
            need_lg = 0; lg_done = len(lg_q)
        for idx in range(len(vm_q) - 1, vm_done - 1, -1):
            if touched & vm_q[idx]:
                need_vm = len(vm_q) - 1 - idx; vm_done = idx + 1; break
        if I.wait_tags:
            for t in I.wait_tags:
                if t not in tag_last:
                    raise ValueError(f"tag {t} never issued")
                idx = tag_last[t]
                if idx >= vm_done:
                    n = len(vm_q) - 1 - idx
                    need_vm = n if need_vm is None else min(need_vm, n)
                    vm_done = max(vm_done, idx + 1)
        if need_lg is not None:
            if need_lg > 15:
                need_lg = 15
            I.pre_lg = need_lg
        if need_vm is not None:
            I.pre_vm = min(need_vm, 63)
        if k == "waitonly":
            continue
        need = 0
        def req(p, n):
            nonlocal need
            d = pos - p - 1
            if d < n: need = max(need, n - d)
        def reqm(rec, n):
            nonlocal need
            d = pos - rec[0] - 1
            kk = mf_ord - rec[2] - 1
            if kk >= 1:
                d = max(d, 8 * kk - 1 + (pos - mf_lastpos - 1))
            if d < n: need = max(need, n - d)
        if k == "mfma":
            ab, dr, cr = I.meta
            for r in I.rd:
                if r in valu_w: req(valu_w[r], 2)
            for r in ab:
                if r in mfma_w: reqm(mfma_w[r], 12)
            for r in cr:
                if r in mfma_w:
                    if mfma_w[r][1] == cr: pass
                    else: reqm(mfma_w[r], 10)
            for r in dr:
                if r in mfma_w and r not in cr:
                    reqm(mfma_w[r], 10)
        elif k in VALUISH:
            for r in touched:
                if r in mfma_w: reqm(mfma_w[r], 12)
            for r in I.wr:
                if r in srcc_r: req(srcc_r[r], 7)
                if r in store_rd: req(store_rd[r], 2)
            for r in I.rd:
                if r in trans_w and k != "trans": req(trans_w[r], 1)
                if r in trans_w and k == "trans": req(trans_w[r], 1)
                if r in sgpr_vw: req(sgpr_vw[r], 2)
            if k == "permlane":
                for r in I.rd:
                    if r in valu_w: req(valu_w[r], 2)
            if I.text.startswith("v_readfirstlane") or I.text.startswith("v_readlane"):
                for r in I.rd:
                    if r in valu_w: req(valu_w[r], 1)
        elif k in ("dsrd", "dswr", "dma", "vmld", "vmst"):
            for r in touched:
                if r in mfma_w: reqm(mfma_w[r], 12)
            for r in I.rd:
                if r in sgpr_vw and k in ("dma", "vmld", "vmst"): req(sgpr_vw[r], 5)
            if k == "dma": req(m0_w, 1)
        elif k == "branch":
            for r in I.rd:
                if r in sgpr_vw: req(sgpr_vw[r], 1)
        elif k == "salu":
            for r in I.rd:
                if r in sgpr_vw: req(sgpr_vw[r], 2)
        I.pre_nop = need
        nopcount += need
        pos += need
        if k == "mfma":
            ab, dr, cr = I.meta
            for r in dr:
                mfma_w[r] = (pos, dr, mf_ord); valu_w.pop(r, None); trans_w.pop(r, None)
            for r in cr: srcc_r[r] = pos
            mf_ord += 1; mf_lastpos = pos
        elif k in VALUISH:
            for r in I.wr:
                if r[0] in "va" and r != "vcc":
                    valu_w[r] = pos; mfma_w.pop(r, None)
                    if k == "trans": trans_w[r] = pos
                    else: trans_w.pop(r, None)
                else:
                    sgpr_vw[r] = pos
        elif k == "salu":
            for r in I.wr:
                if r == "m0": m0_w = pos
                sgpr_vw.pop(r, None)
        elif k == "dsrd":
            lg_q.append(set(I.wr))
            for r in I.wr: mfma_w.pop(r, None); valu_w.pop(r, None); trans_w.pop(r, None)
        elif k == "dswr":
            lg_q.append(set())
        elif k in ("dma", "vmld", "vmst"):
            vm_q.append(set(I.wr))
            if I.tag is not None: tag_last[I.tag] = len(vm_q) - 1
            for r in I.wr: mfma_w.pop(r, None); valu_w.pop(r, None); trans_w.pop(r, None)
            if k == "vmst":
                for r in I.rd:
                    if r[0] in "va": store_rd[r] = pos
        pos += I.meta if k == "nop" else 1
    return nopcount

def emit_ins(I):
    out = []
    w = []
    if I.pre_vm is not None: w.append(f"vmcnt({I.pre_vm})")
    if I.pre_lg is not None: w.append(f"lgkmcnt({I.pre_lg})")
    if w: out.append("  s_waitcnt " + " ".join(w))
    n = I.pre_nop
    while n > 0:
        c = min(n, 16); out.append(f"  s_nop {c-1}"); n -= c
    if I.kind == "label": out.append(I.text)
    elif I.text: out.append("  " + I.text)
    return out

def emit(stream):
    out = []
    for I in stream: out += emit_ins(I)
    return out

def merge_into(dst, srcs):
    for other in srcs:
        assert len(other) == len(dst), (len(other), len(dst))
        for a, b in zip(dst, other):
            assert a.text == b.text and a.kind == b.kind, (a.text, b.text)
            if b.pre_lg is not None: a.pre_lg = b.pre_lg if a.pre_lg is None else min(a.pre_lg, b.pre_lg)
            if b.pre_vm is not None: a.pre_vm = b.pre_vm if a.pre_vm is None else min(a.pre_vm, b.pre_vm)
            a.pre_nop = max(a.pre_nop, b.pre_nop)

def interleave(mf, fill, start_gap=0, budget=24, lead=0):
    items = []
    for f in fill:
        if isinstance(f, tuple): items.append(f)
        else: items.append((f, -1))
    n = len(mf)
    total = sum(i.cost for i, _ in items)
    out = []
    qi = 0
    done_cost = 0
    while qi < len(items) and done_cost < lead and items[qi][1] < 0:
        out.append(items[qi][0]); done_cost += items[qi][0].cost; qi += 1
    rem_total = total - done_cost
    acc = 0
    for g in range(n):
        out.append(mf[g])
        target = rem_total * (g + 1) / n
        while qi < len(items) and items[qi][1] <= g and (acc + items[qi][0].cost * 0.5 <= target or g == n - 1):
            out.append(items[qi][0]); acc += items[qi][0].cost; qi += 1
    while qi < len(items):
        out.append(items[qi][0]); qi += 1
    return out
```

```python
from asmlib import *
import math

class Cfg:
    D = 4
    R = 8
    THR = 1024.0
    kv_nt = True
    o_flags = ""
    kv_per_stage = 8
    kv_first_stage = 0
    stamps = False
    dump = None
    no_kv_loop = False
    no_mfma_loop = False
    no_sm = False
    no_xw = False
    no_kv_pre = False
    warm_wo = True

K_BASE, V_BASE, WQ_BASE, X_BASE = 0, 65536, 32768, 98304
XBUF = 28672
sK, sV, sX, sW, sO = 8, 12, 16, 20, 24
sWAVE, sB, sH = 28, 29, 30
sT0, sT1, sT2, sT3 = 31, 32, 33, 34
sKOFF, sVOFF, sXOFF, sWOFF = 36, 37, 38, 39
sCNT, sSITE, sTHR, sSCALE = 40, 41, 42, 43
sOOFF = 44
sST = 48
vLANE = 0
vKA, vVA = 2, 10
vP = 16
vT = {'A': 24, 'B': 25}; vL = {'A': 26, 'B': 27}
vS0, vS1, vS2, vS3 = 28, 29, 30, 31
vPK = {'A': 32, 'B': 40}
vWA, vXA = 48, 52
vKV = 56
vXO, vWO = 64, 74
vQ = {'A': 64, 'B': 96}
vS = {'A': 128, 'B': 144}
vNM = {'A': 160, 'B': 176}
vACC = {'A': 128, 'B': 192}
aO = {'A': 0, 'B': 64}
aKF, aVF = 128, 160
aWF = [128, 160]; aXF = [192, 224]

SCALE = math.log2(math.e) / math.sqrt(128.0)
import struct
def f2u(x): return struct.unpack("<I", struct.pack("<f", x))[0]

def setup_common(cfg):
    L = []
    a = L.append
    a(raw("s_cmp_ge_u32 s2, 256"))
    a(raw("s_cbranch_scc1 A_end", "branch"))
    a(raw("s_load_dwordx2 s[4:5], s[0:1], 0"))
    a(raw("s_load_dwordx4 s[8:11], s[0:1], 8"))
    a(raw("s_load_dwordx2 s[6:7], s[0:1], 24"))
    a(raw("s_load_dwordx2 s[46:47], s[0:1], 56"))
    a(raw("s_load_dwordx2 s[44:45], s[0:1], 32"))
    if cfg.stamps:
        a(raw("s_memrealtime s[74:75]")); a(raw("s_memtime s[48:49]"))
    a(valu("v_lshrrev_b32", V(1), 6, V(0)))
    a(valu("v_and_b32", V(0), 63, V(0)))
    a(valu("v_readfirstlane_b32", S(sWAVE), V(1)))
    a(salu("s_and_b32", S(sT0), S(2), 7))
    a(salu("s_lshr_b32", S(sT1), S(2), 3))
    a(salu("s_lshl_b32", S(sT0), S(sT0), 2))
    a(salu("s_and_b32", S(sT2), S(sT1), 3))
    a(salu("s_add_u32", S(sH), S(sT0), S(sT2)))
    a(salu("s_lshr_b32", S(sB), S(sT1), 2))
    a(raw("s_waitcnt lgkmcnt(0)"))
    a(salu("s_lshl_b32", S(sT0), S(sB), 5))
    a(salu("s_add_u32", S(sT0), S(sT0), S(sH)))
    a(salu("s_lshr_b32", S(sT1), S(sT0), 14))
    a(salu("s_lshl_b32", S(sT0), S(sT0), 18))
    a(salu("s_add_u32", S(12), S(10), S(sT0)))
    a(salu("s_addc_u32", S(13), S(11), S(sT1)))
    a(salu("s_add_u32", S(8), S(8), S(sT0)))
    a(salu("s_addc_u32", S(9), S(9), S(sT1)))
    a(salu("s_mov_b32", S(10), 262144))
    a(salu("s_mov_b32", S(11), 0x20000))
    a(salu("s_mov_b32", S(14), 262144))
    a(salu("s_mov_b32", S(15), 0x20000))
    a(salu("s_mul_i32", S(sT0), S(sB), 258048))
    a(salu("s_add_u32", S(16), S(4), S(sT0)))
    a(salu("s_addc_u32", S(17), S(5), 0))
    a(salu("s_mov_b32", S(18), 258048))
    a(salu("s_mov_b32", S(19), 0x20000))
    a(salu("s_lshl_b32", S(sT0), S(sH), 8))
    a(salu("s_add_u32", S(20), S(6), S(sT0)))
    a(salu("s_addc_u32", S(21), S(7), 0))
    a(salu("s_sub_u32", S(22), 576 * 8192, S(sT0)))
    a(salu("s_mov_b32", S(23), 0x20000))
    a(salu("s_mul_i32", S(sT0), S(sB), 1835008))
    a(salu("s_lshl_b32", S(sT1), S(sH), 13))
    a(salu("s_add_u32", S(sT0), S(sT0), S(sT1)))
    a(salu("s_add_u32", S(24), S(46), S(sT0)))
    a(salu("s_addc_u32", S(25), S(47), 0))
    a(salu("s_sub_u32", S(26), 8 * 1835008, S(sT0)))
    a(salu("s_mov_b32", S(27), 0x20000))
    a(salu("s_mul_i32", S(sT0), S(2), 18432))
    a(salu("s_add_u32", S(4), S(44), S(sT0)))
    a(salu("s_addc_u32", S(5), S(45), 0))
    a(salu("s_mov_b32", S(6), 18432))
    a(salu("s_mov_b32", S(7), 0x20000))
    a(salu("s_mov_b32", S(sTHR), f2u(cfg.THR)))
    a(salu("s_mov_b32", S(sSCALE), f2u(SCALE)))
    a(valu("v_and_b32", V(1), 31, V(0)))
    a(valu("v_lshrrev_b32", V(14), 5, V(0)))
    a(valu("v_and_b32", V(15), 3, V(1)))
    a(valu("v_lshrrev_b32", V(28), 3, V(1)))
    a(valu("v_lshl_or_b32", V(15), V(28), 2, V(15)))
    a(valu("v_xor_b32", V(15), V(15), V(14)))
    a(valu("v_lshlrev_b32", V(28), 8, V(1)))
    for s in range(8):
        a(valu("v_xor_b32", V(29), 2 * s, V(15)))
        a(valu("v_lshl_add_u32", V(vKA + s), V(29), 4, V(28)))
    a(valu("v_and_b32", V(28), 1, V(0)))
    a(valu("v_lshlrev_b32", V(28), 1, V(28)))
    a(valu("v_bfe_u32", V(29), V(0), 1, 1))
    a(valu("v_or_b32", V(28), V(28), V(29)))
    a(valu("v_lshlrev_b32", V(28), 3, V(28)))
    a(valu("v_bfe_u32", V(29), V(0), 4, 1))
    a(valu("v_lshl_or_b32", V(28), V(29), 5, V(28)))
    a(valu("v_bfe_u32", V(29), V(0), 2, 2))
    a(valu("v_lshl_add_u32", V(30), V(14), 2, V(29)))
    a(valu("v_lshl_add_u32", V(30), V(30), 8, V(28)))
    a(valu("v_add_u32", V(30), V_BASE, V(30)))
    a(valu("v_lshl_add_u32", V(31), V(14), 3, V(29)))
    a(valu("v_lshl_add_u32", V(31), V(31), 8, V(28)))
    a(valu("v_add_u32", V(31), WQ_BASE, V(31)))
    for dt in range(4):
        a(valu("v_xor_b32", V(15), dt, V(29)))
        a(valu("v_lshl_add_u32", V(vVA + dt), V(15), 6, V(30)))
        a(valu("v_lshl_add_u32", V(vWA + dt), V(15), 6, V(31)))
    a(valu("v_bfe_u32", V(15), V(1), 1, 3))
    a(valu("v_xor_b32", V(15), V(15), V(14)))
    a(salu("s_lshl_b32", S(sT0), S(sWAVE), 13))
    a(salu("s_add_u32", S(sT0), S(sT0), X_BASE))
    a(valu("v_lshlrev_b32", V(28), 7, V(1)))
    a(valu("v_add_u32", V(28), S(sT0), V(28)))
    for ks in range(4):
        a(valu("v_xor_b32", V(29), 2 * ks, V(15)))
        a(valu("v_lshl_add_u32", V(vXA + ks), V(29), 4, V(28)))
    return L

def stage_pieces(w):
    xp = list(range(8 * w, 8 * w + 8)) + [[24], [25], [26, 27]][w]
    wp = [[0, 1, 2], [3, 4, 5], [6, 7]][w]
    return xp, wp

def setup_loader(w):
    L = []; a = L.append
    xp, wp = stage_pieces(w)
    a(valu("v_lshrrev_b32", V(28), 3, V(0)))
    a(valu("v_mul_u32_u24", V(28), 1152, V(28)))
    a(valu("v_and_b32", V(29), 7, V(0)))
    a(valu("v_lshrrev_b32", V(30), 4, V(0)))
    a(valu("v_xor_b32", V(29), V(29), V(30)))
    a(valu("v_xor_b32", V(30), 4, V(29)))
    a(valu("v_lshl_add_u32", V(29), V(29), 4, V(28)))
    a(valu("v_lshl_add_u32", V(30), V(30), 4, V(28)))
    for n, p in enumerate(xp):
        a(valu("v_add_u32", V(vXO + n), 8 * p * 1152, V(29 + (p & 1))))
    a(valu("v_lshrrev_b32", V(28), 4, V(0)))
    a(valu("v_and_b32", V(29), 15, V(0)))
    a(valu("v_lshlrev_b32", V(30), 2, V(28)))
    a(valu("v_xor_b32", V(29), V(29), V(30)))
    a(valu("v_lshlrev_b32", V(29), 4, V(29)))
    a(valu("v_lshl_add_u32", V(29), V(28), 13, V(29)))
    for n, p in enumerate(wp):
        a(valu("v_add_u32", V(vWO + n), 4 * p * 8192, V(29)))
    return L

def setup_kv():
    L = []; a = L.append
    a(valu("v_lshrrev_b32", V(28), 4, V(0)))
    a(valu("v_and_b32", V(29), 15, V(0)))
    a(valu("v_lshlrev_b32", V(30), 8, V(28)))
    for q in range(4):
        a(valu("v_or_b32", V(31), q << 2, V(28)))
        a(valu("v_xor_b32", V(31), V(31), V(29)))
        a(valu("v_lshl_add_u32", V(vKV + q), V(31), 4, V(30)))
        if q >= 2: a(valu("v_add_u32", V(vKV + q), 4096, V(vKV + q)))
    a(valu("v_lshlrev_b32", V(31), 2, V(28)))
    a(valu("v_xor_b32", V(31), V(31), V(29)))
    a(valu("v_lshl_add_u32", V(vKV + 4), V(31), 4, V(30)))
    a(valu("v_add_u32", V(vKV + 5), 4096, V(vKV + 4)))
    return L

def kv_tile_dma(kind, t, cfg, dynamic):
    L = []
    slot = t % cfg.R
    base = (K_BASE if kind == 'K' else V_BASE) + slot * 8192
    srd = S(sK, 4) if kind == 'K' else S(sV, 4)
    so = S(sKOFF) if kind == 'K' else S(sVOFF)
    if not dynamic:
        L.append(salu("s_mov_b32", so, t * 8192))
    for p in range(8):
        if p % 4 == 0:
            L.append(salu("s_mov_b32", "m0", base + (p // 4) * 4096))
        vo = V(vKV + p // 2) if kind == 'K' else V(vKV + 4 + p // 4)
        d = dma(vo, srd, so, imm=(p % 4) * 1024, nt=cfg.kv_nt, tag=(kind, t))
        d.cost = 8
        L.append(d)
    if dynamic:
        L.append(salu("s_add_u32", so, so, 8192))
    return L

def x_dma(w, S_, cfg):
    xp, _ = stage_pieces(w)
    L = [salu("s_mov_b32", S(sXOFF), S_ * 128)]
    for n, p in enumerate(xp):
        L.append(salu("s_mov_b32", "m0", X_BASE + (S_ % 2) * XBUF + p * 1024))
        d = dma(V(vXO + n), S(sX, 4), S(sXOFF), tag=('x', S_)); d.cost = 8
        L.append(d)
    return L

def wq_dma(w, s, cfg):
    _, wp = stage_pieces(w)
    L = [salu("s_mov_b32", S(sWOFF), s * 262144)]
    for n, p in enumerate(wp):
        L.append(salu("s_mov_b32", "m0", WQ_BASE + (s % 4) * 8192 + p * 1024))
        d = dma(V(vWO + n), S(sW, 4), S(sWOFF), tag=('w', s)); d.cost = 8
        L.append(d)
    return L

def wq_reads(s):
    L = []
    for u in range(2):
        for dt in range(4):
            for t in range(2):
                L.append(ds_tr(A(aWF[s % 2] + (u * 4 + dt) * 4 + 2 * t, 2), V(vWA + dt), (s % 4) * 8192 + u * 4096 + t * 1024))
    return L

def x_reads(S_, tiles):
    L = []
    for ks in range(4):
        for ti, X in enumerate(tiles):
            L.append(ds_b128(A(aXF[S_ % 2] + (ti * 4 + ks) * 4, 4), V(vXA + ks), (S_ % 2) * XBUF + ti * 4096))
    return L

def spread(mf, lists, lead=None):
    n = len(mf)
    gaps = {g: [] for g in range(-1, n)}
    for (ins, g0, g1) in lists:
        if not ins: continue
        g1 = min(g1, n - 1)
        tot = sum(i.cost for i in ins)
        cnt = g1 - g0 + 1
        acc = 0.0
        for i in ins:
            g = g0 + min(cnt - 1, int((acc + i.cost * 0.5) * cnt / tot))
            gaps[g].append(i); acc += i.cost
    out = list(gaps[-1])
    for g in range(n):
        out.append(mf[g]); out += gaps[g]
    return out

def qproj(w, cfg):
    tiles = ['A', 'B'] if w < 3 else ['A']
    L = []
    loader = w < 3
    if loader:
        L += setup_loader(w)
        L += wq_dma(w, 0, cfg) + x_dma(w, 0, cfg) + wq_dma(w, 1, cfg) + x_dma(w, 1, cfg) + wq_dma(w, 2, cfg) + wq_dma(w, 3, cfg)
    else:
        L += setup_kv()
    kvq = []
    if not loader:
        for t in range(4):
            if not cfg.no_kv_pre: kvq += [kv_tile_dma('K', t, cfg, False), kv_tile_dma('V', t, cfg, False)]
    zo = [valu("v_accvgpr_write_b32", A(aO[X] + i), 0) for X in tiles for i in range(64)]
    if cfg.stamps: L.append(stamp(1))
    L.append(barrier(wait_tags=[('w', 0), ('x', 0)] if loader else None))
    if cfg.stamps: L.append(stamp(2))
    L += wq_reads(0) + x_reads(0, tiles)
    kv_pieces_left = sum(kvq, [])
    for s in range(18):
        S_ = s // 2
        wt = []
        if loader:
            if s + 1 < 18: wt.append(('w', s + 1))
            if s % 2 == 1 and S_ + 1 < 9: wt.append(('x', S_ + 1))
        if cfg.no_xw and loader: wt = [t for t in wt if (t[0] == 'w' and t[1] < 4) or (t[0] == 'x' and t[1] < 2)]
        if (not loader) and s == 17:
            wt = [('K', 0), ('V', 0), ('K', 1)]
            if cfg.no_kv_pre: wt = []
        L.append(marker(f"qs{s}"))
        L.append(barrier(wait_tags=wt or None))
        if cfg.stamps and s in (1, 2, 6, 10, 14, 17): L.append(stamp({1: 3, 2: 4, 6: 5, 10: 6, 14: 7, 17: 8}[s]))
        mf = []
        order = [(u, X) for u in range(2) for X in tiles] if s < 17 else [(u, X) for X in tiles for u in range(2)]
        for (u, X) in order:
            ti = tiles.index(X)
            for dt in range(4):
                d = V(vACC[X] + 16 * dt, 16)
                c = 0 if (s == 0 and u == 0) else d
                mf.append(mfma(d, A(aWF[s % 2] + (u * 4 + dt) * 4, 4), A(aXF[S_ % 2] + (ti * 4 + 2 * (s % 2) + u) * 4, 4), c))
        n = len(mf)
        rd = []
        if s + 1 < 18: rd += wq_reads(s + 1)
        if s % 2 == 1 and S_ + 1 < 9: rd += x_reads(S_ + 1, tiles)
        dm = []
        if loader and not cfg.no_xw:
            if s + 4 < 18: dm += wq_dma(w, s + 4, cfg)
            if s % 2 == 0 and S_ + 2 < 9: dm += x_dma(w, S_ + 2, cfg)
        elif loader:
            pass
        else:
            if s >= cfg.kv_first_stage and s < 17:
                take = 0; cntp = 0
                while take < len(kv_pieces_left) and cntp < cfg.kv_per_stage:
                    if kv_pieces_left[take].kind == 'dma': cntp += 1
                    take += 1
                dm += kv_pieces_left[:take]; kv_pieces_left = kv_pieces_left[take:]
            if s == 17:
                dm += kv_pieces_left; kv_pieces_left = []
                for t in range(4, cfg.D + 1):
                    if not cfg.no_kv_pre: dm += kv_tile_dma('K', t, cfg, False)
                for t in range(4, cfg.D):
                    dm += kv_tile_dma('V', t, cfg, False)
        if (not loader) and cfg.warm_wo and 8 <= s < 17:
            for i in range(2):
                n_ = (s - 8) * 2 + i
                dm.append(valu("v_lshlrev_b32", V(62), 4, V(vLANE)))
                dm.append(valu("v_add_u32", V(62), n_ * 1024, V(62)))
                dm.append(bload("buffer_load_dwordx4", V(96 + 4 * (n_ % 8), 4), V(62), S(4, 4), 0))
        z = zo[(s * len(zo)) // 17:((s + 1) * len(zo)) // 17] if s < 17 else []
        if s == 17:
            kr = [ds_b128(A(aKF + 4 * ss, 4), V(vKA + ss), 0) for ss in range(8)]
            fin = finalize('A') if w < 3 else []
            if w < 3:
                L += spread(mf, [(kr, 0, 7), (fin[:40], 9, 15)])
                rest = fin[40:]
            else:
                L += spread(mf, [(kr, 0, 3), (dm, 0, 7)])
                rest = finalize('A')
            L += rest
        else:
            L += spread(mf, [(rd, 0, n - 1), (dm, 0, n - 1), (z, 0, n - 1)])
    return L

def finalize(X):
    L = []
    for dt in range(4):
        for hf in range(2):
            for i in range(4):
                r = vACC[X] + 16 * dt + 8 * hf + 2 * i
                L.append(valu("v_mul_f32", V(r), S(sSCALE), V(r)))
                L.append(valu("v_mul_f32", V(r + 1), S(sSCALE), V(r + 1)))
            for i in range(4):
                r = vACC[X] + 16 * dt + 8 * hf + 2 * i
                L.append(valu("v_cvt_pk_bf16_f32", V(vQ[X] + (2 * dt + hf) * 4 + i), V(r), V(r + 1)))
    return L

def qk_mfmas(X, first):
    L = []
    for s in range(8):
        c = (0 if first else V(vNM[X], 16)) if s == 0 else V(vS[X], 16)
        L.append(mfma(V(vS[X], 16), A(aKF + 4 * s, 4), V(vQ[X] + 4 * s, 4), c))
    return L

def pv_mfmas(X):
    L = []
    for ks in range(2):
        for dt in range(4):
            d = A(aO[X] + 16 * dt, 16)
            L.append(mfma(d, A(aVF + (4 * ks + dt) * 4, 4), V(vPK[X] + 4 * ks, 4), d))
    return L

def k_reads(t, cfg):
    return [ds_b128(A(aKF + 4 * s, 4), V(vKA + s), (t % cfg.R) * 8192) for s in range(8)]

def v_reads(t, cfg):
    L = []
    for ks in range(2):
        for dt in range(4):
            for tt in range(2):
                L.append(ds_tr(A(aVF + (4 * ks + dt) * 4 + 2 * tt, 2), V(vVA + dt), (t % cfg.R) * 8192 + ks * 4096 + tt * 2048))
    return L

NO_SM = False
def softmax_core(X):
    L = []
    if NO_SM:
        return [valu("v_mov_b32", V(vT[X]), 1.0)]
    p = lambda e: V(vP + e % 8)
    def post(e):
        r = []
        if e == 1: r.append(valu("v_add_f32", V(vT[X]), p(0), p(1)))
        elif e > 1: r.append(valu("v_add_f32", V(vT[X]), V(vT[X]), p(e)))
        if e % 2 == 1: r.append(valu("v_cvt_pk_bf16_f32", V(vPK[X] + e // 2), p(e - 1), p(e)))
        return r
    for e in range(16):
        L.append(valu("v_exp_f32", p(e), V(vS[X] + e)))
        if e >= 1: L += post(e - 1)
    L += post(15)
    return L

def softmax_check(X, site):
    b = Ins(f"s_cbranch_vccnz FBS_{site}\nRET_{site}:", "branch", ["vcc"], [])
    return [Ins(f"v_cmp_nge_f32 vcc, s{sTHR}, v{vT[X]}", "valu", [f"s{sTHR}", f"v{vT[X]}"], ["vcc"]),
            b,
            valu("v_add_f32", V(vL[X]), V(vL[X]), V(vT[X]))]

def rowmax(X, dst):
    L = []
    s = vS[X]
    L.append(valu("v_max3_f32", V(dst), V(s), V(s + 1), V(s + 2)))
    for i in range(3, 15, 2):
        L.append(valu("v_max3_f32", V(dst), V(dst), V(s + i), V(s + i + 1)))
    L.append(valu("v_max_f32", V(dst), V(dst), V(s + 15)))
    L.append(valu("v_mov_b32", V(dst + 1), V(dst)))
    L.append(valu("v_permlane32_swap_b32", V(dst), V(dst + 1)))
    L.append(valu("v_max_f32", V(dst), V(dst), V(dst + 1)))
    return L

def first_max(X):
    L = rowmax(X, vS0)
    L.append(valu("v_sub_f32", V(vNM[X]), 0, V(vS0)))
    for i in range(1, 16):
        L.append(valu("v_mov_b32", V(vNM[X] + i), V(vNM[X])))
    for i in range(16):
        L.append(valu("v_sub_f32", V(vS[X] + i), V(vS[X] + i), V(vS0)))
    return L

def fallback(X):
    L = [label(f"FB_{X}"), nop(15), nop(15)]
    L += rowmax(X, vS0)
    L.append(valu("v_max_f32", V(vS0), 0, V(vS0)))
    L.append(valu("v_sub_f32", V(vS1), 0, V(vS0)))
    L.append(valu("v_exp_f32", V(vS1), V(vS1)))
    L.append(nop(1))
    L.append(valu("v_mul_f32", V(vL[X]), V(vL[X]), V(vS1)))
    for i in range(64):
        L.append(valu("v_accvgpr_read_b32", V(vS2), A(aO[X] + i)))
        L.append(valu("v_mul_f32", V(vS2), V(vS2), V(vS1)))
        L.append(valu("v_accvgpr_write_b32", A(aO[X] + i), V(vS2)))
    for i in range(16):
        L.append(valu("v_sub_f32", V(vNM[X] + i), V(vNM[X] + i), V(vS0)))
        L.append(valu("v_sub_f32", V(vS[X] + i), V(vS[X] + i), V(vS0)))
    L += softmax_core(X)
    L.append(nop(7))
    return L

def step2(j, cfg, site0):
    mf = pv_mfmas('A') + qk_mfmas('A', False) + pv_mfmas('B') + qk_mfmas('B', False)
    kr = k_reads(j + 1, cfg); vr = v_reads(j + 1, cfg)
    smB = softmax_core('B') + softmax_check('B', site0)
    smA = softmax_core('A') + softmax_check('A', site0 + 1)
    h0 = spread(mf[:16], [(kr, 0, 7), (smB, 1, 15)])
    idx = max(i for i, x in enumerate(h0) if x.kind == 'mfma')
    h0 = h0[:idx + 1] + [barrier()] + h0[idx + 1:]
    h1 = spread(mf[16:], [(vr, 0, 15), (smA, 1, 15)])
    return h0 + h1

def final2(cfg, site0):
    smB = softmax_core('B') + softmax_check('B', site0)
    L = spread(pv_mfmas('A'), [(smB, 1, 7)])
    return L

def step1(j, cfg, site, dyn=True):
    mf = pv_mfmas('A') + qk_mfmas('A', False)
    kr = k_reads(j + 1, cfg); vr = v_reads(j + 1, cfg)
    dm = []
    if j + cfg.D <= 31: dm += kv_tile_dma('V', j + cfg.D, cfg, True)
    if j + 1 + cfg.D <= 31: dm += kv_tile_dma('K', j + 1 + cfg.D, cfg, True)
    if cfg.no_kv_loop: dm = []
    h0 = spread(mf, [(kr, 0, 7), (dm, 0, 15)])
    wt = [('V', j + 1)] + ([('K', j + 2)] if j + 2 <= 31 else [])
    if cfg.no_kv_loop: dm = []; wt = None
    h0.append(barrier(wait_tags=wt))
    sm = softmax_core('A') + softmax_check('A', site)
    h1 = []
    vi = 0
    for i, x in enumerate(sm):
        h1.append(x)
        if vi < len(vr) and i % 2 == 1 and x.kind != 'branch' and x.kind != 'label': h1.append(vr[vi]); vi += 1
    pre = vr[vi:]
    return h0 + pre + h1

def normalize_store(X, tile_soff_ins, cfg):
    L = []
    l = vL[X]
    L.append(valu("v_mov_b32", V(vS1), V(l)))
    L.append(valu("v_mov_b32", V(vS0), V(l)))
    L.append(valu("v_permlane32_swap_b32", V(vS0), V(vS1)))
    L.append(valu("v_add_f32", V(vS0), V(vS0), V(vS1)))
    L.append(valu("v_rcp_f32", V(vS0), V(vS0)))
    L += tile_soff_ins
    tmp = vS[X]
    pk = vNM[X]
    n = 0
    for dt in range(4):
        for hf in range(2):
            for i in range(8):
                L.append(valu("v_accvgpr_read_b32", V(tmp + 8 * (n % 2) + i), A(aO[X] + 16 * dt + 8 * hf + i)))
            for i in range(8):
                L.append(valu("v_mul_f32", V(tmp + 8 * (n % 2) + i), V(tmp + 8 * (n % 2) + i), V(vS0)))
            for i in range(4):
                L.append(valu("v_cvt_pk_bf16_f32", V(pk + 4 * (n % 4) + i), V(tmp + 8 * (n % 2) + 2 * i), V(tmp + 8 * (n % 2) + 2 * i + 1)))
            kk = 2 * dt + hf
            L.append(bstore("buffer_store_dwordx4", V(pk + 4 * (n % 4), 4), V(14 + kk // 4), S(sO, 4), S(sOOFF), imm=(kk % 4) * 1024, flags=cfg.o_flags))
            n += 1
    return L

def attention(w3, cfg, sitebase):
    pro = []
    if not w3:
        pro += spread(qk_mfmas('A', True), [(finalize('B')[:40], 0, 7)]) + finalize('B')[40:]
        fa = first_max('A') + softmax_core('A') + [valu("v_mov_b32", V(vL['A']), V(vT['A']))]
        pro += spread(qk_mfmas('B', True), [(v_reads(0, cfg), 0, 7), (fa[:30], 3, 7)]) + fa[30:]
        pro += first_max('B') + [valu("v_mov_b32", V(vL['B']), 0)]
    else:
        pro += qk_mfmas('A', True) + v_reads(0, cfg)
        pro += first_max('A') + softmax_core('A') + [valu("v_mov_b32", V(vL['A']), V(vT['A']))]
        pro += [salu("s_mov_b32", S(sVOFF), cfg.D * 8192), salu("s_mov_b32", S(sKOFF), (cfg.D + 1) * 8192)]
    steps = []
    for j in range(31):
        if not w3: steps.append(step2(j, cfg, sitebase + 2 * (j % 8)))
        else: steps.append(step1(j, cfg, sitebase + (j % 8 if j < 24 else 8 + j - 24)))
    fin = []
    ep = [valu("v_lshlrev_b32", V(14), 4, V(vLANE)), valu("v_add_u32", V(15), 4096, V(14))]
    if not w3:
        fin += final2(cfg, sitebase + 16)
        soA = [salu("s_lshl_b32", S(sOOFF), S(sWAVE), 19)]
        soB = [salu("s_add_u32", S(sOOFF), S(sOOFF), 262144)]
        nA = normalize_store('A', soA, cfg)
        fin += ep + spread(pv_mfmas('B'), [(nA[:40], 0, 7)]) + nA[40:]
        fin += normalize_store('B', soB, cfg)
    else:
        fin += pv_mfmas('A')
        fin += ep + normalize_store('A', [salu("s_mov_b32", S(sOOFF), 6 * 262144)], cfg)
    fin.append(raw("s_waitcnt vmcnt(0)"))
    return pro, steps, fin

def stamp(n):
    return raw(f"s_memtime s[{sST + 2*n}:{sST + 2*n + 1}]\n  s_memrealtime s[{74 + 2*n}:{74 + 2*n + 1}]")

def build(cfg):
    global NO_SM
    NO_SM = cfg.no_sm
    out = []
    common = setup_common(cfg)
    analyze(common)
    out += emit(common)
    out += ["  s_cmp_eq_u32 s%d, 1" % sWAVE, "  s_cbranch_scc1 A_W1", "  s_cmp_eq_u32 s%d, 2" % sWAVE, "  s_cbranch_scc1 A_W2",
            "  s_cmp_eq_u32 s%d, 3" % sWAVE, "  s_cbranch_scc1 A_W3"]
    SB2 = 0; SB1 = 32
    pro2, steps2, fin2 = attention(False, cfg, SB2)
    q = [qproj(w, cfg) for w in range(3)]
    lin = [q[w] + [marker("att")] + pro2 for w in range(3)]
    import copy
    variants = []
    for w in range(3):
        pro, steps, fin = attention(False, cfg, SB2)
        qq = qproj(w, cfg)
        stream = qq + pro + sum(steps, []) + fin
        n = analyze(stream)
        variants.append((qq, pro, steps, fin, n))
    qq0, pro, steps, fin, n = variants[0]
    for v in variants[1:]:
        merge_into(pro, [v[1]]); merge_into(fin, [v[3]])
        for a_, b_ in zip(steps, v[2]): merge_into(a_, [b_])
    for r in range(8):
        merge_into(steps[r], [steps[j] for j in range(r + 8, 31, 8)])
    for w in range(3):
        if w > 0: out.append(f"A_W{w}:")
        out += emit(variants[w][0])
        if cfg.stamps: out += emit([stamp(9)])
        if w < 2: out.append("  s_branch A_ATT2")
    out.append("A_ATT2:")
    out += emit(pro)
    if cfg.stamps: out += emit([stamp(10)])
    out.append(f"  s_mov_b32 s{sCNT}, 0")
    out.append("A_LOOP2:")
    for r in range(8):
        out += emit(steps[r])
        if r == 6:
            out += [f"  s_cmp_eq_u32 s{sCNT}, 3", "  s_cbranch_scc1 A_FIN2"]
    out += [f"  s_add_u32 s{sCNT}, s{sCNT}, 1", "  s_branch A_LOOP2", "A_FIN2:"]
    if cfg.stamps: out += emit([stamp(11)])
    out += emit(fin)
    out.append("  s_branch A_DONE")
    nn2 = [v[4] for v in variants]
    pro, steps, fin = attention(True, cfg, SB1)
    qq = qproj(3, cfg)
    stream = qq + pro + sum(steps, []) + fin
    n3 = analyze(stream)
    for r in range(8):
        merge_into(steps[r], [steps[j] for j in range(r + 8, 24, 8)])
    out.append("A_W3:")
    out += emit(qq)
    if cfg.stamps: out += emit([stamp(9)])
    out += emit(pro)
    if cfg.stamps: out += emit([stamp(10)])
    out.append(f"  s_mov_b32 s{sCNT}, 0")
    out.append("A_LOOP1:")
    for r in range(8): out += emit(steps[r])
    out += [f"  s_add_u32 s{sCNT}, s{sCNT}, 1", f"  s_cmp_lt_u32 s{sCNT}, 3", "  s_cbranch_scc1 A_LOOP1"]
    for j in range(24, 31): out += emit(steps[j])
    if cfg.stamps: out += emit([stamp(11)])
    out += emit(fin)
    out.append("A_DONE:")
    if cfg.stamps:
        out += ["  s_memrealtime s[98:99]", "  s_memtime s[72:73]", "  s_waitcnt lgkmcnt(0)",
                "  s_load_dwordx2 s[4:5], s[0:1], 56", "  s_waitcnt lgkmcnt(0)",
                "  s_add_u32 s8, s4, 0x2000000", "  s_addc_u32 s9, s5, 0", "  s_mov_b32 s10, 0x100000", "  s_mov_b32 s11, 0x20000",
                "  s_lshl_b32 s3, s2, 2", f"  s_add_u32 s3, s3, s{sWAVE}", "  s_lshl_b32 s3, s3, 7"]
        for i in range(13): out.append(f"  v_mov_b32 v{16+i}, s{48+2*i}")
        for i in range(13): out.append(f"  v_mov_b32 v{32+i}, s{74+2*i}")
        out += ["  v_mov_b32 v48, s3", "  v_cmp_eq_u32 vcc, 0, v0", "  s_and_saveexec_b64 s[4:5], vcc"]
        for i in range(8): out.append(f"  buffer_store_dwordx4 v[{16+4*i}:{19+4*i}], v48, s[8:11], 0 offen offset:{16*i}")
        out.append("  s_waitcnt vmcnt(0)")
    out.append("A_end:")
    out.append("  s_endpgm")
    sitesA, sitesB = [], []
    for r in range(8):
        sitesB.append(SB2 + 2 * r); sitesA.append(SB2 + 2 * r + 1)
    sitesB.append(SB2 + 16)
    sitesA3 = [SB1 + i for i in range(8)] + [SB1 + 8 + i for i in range(7)]
    for X, nm, sites in (('A', 'A', sitesA), ('B', 'B', sitesB), ('A', 'A3', sitesA3)):
        for st in sites:
            out += [f"FBS_{st}:", f"  s_mov_b32 s{sSITE}, {st}", f"  s_branch FB_{nm}"]
        fb = fallback(X)
        fb[0] = label(f"FB_{nm}")
        analyze(fb)
        out += emit(fb)
        for st in sites[:-1]:
            out += [f"  s_cmp_eq_u32 s{sSITE}, {st}", f"  s_cbranch_scc1 RET_{st}"]
        out.append(f"  s_branch RET_{sites[-1]}")
    return out, (nn2, n3)

if __name__ == "__main__":
    cfg = Cfg()
    o, n = build(cfg)
    print("nops inserted:", n, "lines:", len(o))
    open("a_body.s", "w").write("\n".join(o) + "\n")
```

```python
from asmlib import *

class CfgB:
    P = 14
    stamps = False
    o_flags = ""
    w_flags = ""
    no_mfma = False
    no_o = False
    no_w = False
    same_tile = 0
    mapping = 0

sO, sW, sOUT = 8, 12, 16
sWAVE, sM, sN = 28, 29, 30
sT0, sT1, sT2 = 31, 32, 33
sOOFF, sWOFF, sLB, sCNT = 36, 37, 38, 40
vOA = 2
vWA = 4
vTR = 6
vAF = 16
vOR = 32
vACC = 160
RING = 16

def setup(cfg):
    L = []; a = L.append
    a(raw("s_cmp_ge_u32 s2, 256"))
    a(raw("s_cbranch_scc1 B_end", "branch"))
    a(salu("s_and_b32", S(sT0), S(2), 7))
    a(salu("s_lshr_b32", S(sT1), S(2), 3))
    a(salu("s_lshl_b32", S(sT0), S(sT0), 5))
    a(salu("s_add_u32", S(sT0), S(sT0), S(sT1)))
    a(raw(f"s_cmp_ge_u32 s{sT0}, 252"))
    a(raw("s_cbranch_scc1 B_end", "branch"))
    a(raw("s_load_dwordx4 s[4:7], s[0:1], 32"))
    a(raw("s_load_dwordx2 s[46:47], s[0:1], 56"))
    if cfg.stamps:
        a(raw("s_memrealtime s[74:75]")); a(raw("s_memtime s[48:49]"))
    if cfg.same_tile == 1:
        a(salu("s_mov_b32", S(sT0), 0))
    if cfg.same_tile == 2:
        a(salu("s_and_b32", S(sT0), S(2), 7))
        a(salu("s_mul_i32", S(sT0), S(sT0), 28))
    a(salu("s_mul_i32", S(sM), S(sT0), 57))
    a(salu("s_lshr_b32", S(sM), S(sM), 9))
    a(salu("s_mul_i32", S(sT1), S(sM), 9))
    a(salu("s_sub_u32", S(sN), S(sT0), S(sT1)))
    a(valu("v_lshrrev_b32", V(1), 6, V(0)))
    a(valu("v_and_b32", V(0), 63, V(0)))
    a(valu("v_readfirstlane_b32", S(sWAVE), V(1)))
    a(valu("v_lshlrev_b32", V(vOA), 4, V(0)))
    a(valu("v_add_u32", V(vOA + 1), 262144, V(vOA)))
    a(valu("v_lshrrev_b32", V(8), 3, V(0)))
    a(valu("v_mul_u32_u24", V(8), 1152, V(8)))
    a(valu("v_and_b32", V(9), 7, V(0)))
    a(valu("v_bfe_u32", V(10), V(0), 4, 1))
    a(valu("v_lshlrev_b32", V(10), 2, V(10)))
    a(valu("v_xor_b32", V(9), V(9), V(10)))
    a(valu("v_lshl_add_u32", V(vWA), V(9), 4, V(8)))
    a(valu("v_add_u32", V(vWA + 1), 9216 - 1024, V(vWA)))
    a(valu("v_and_b32", V(8), 1, V(0)))
    a(valu("v_lshlrev_b32", V(8), 1, V(8)))
    a(valu("v_bfe_u32", V(9), V(0), 1, 1))
    a(valu("v_or_b32", V(8), V(8), V(9)))
    a(valu("v_lshlrev_b32", V(8), 3, V(8)))
    a(valu("v_bfe_u32", V(9), V(0), 4, 1))
    a(valu("v_lshl_or_b32", V(8), V(9), 5, V(8)))
    a(valu("v_bfe_u32", V(9), V(0), 2, 2))
    a(valu("v_lshrrev_b32", V(10), 5, V(0)))
    a(valu("v_lshl_add_u32", V(10), V(10), 3, V(9)))
    a(valu("v_lshl_add_u32", V(8), V(10), 7, V(8)))
    a(valu("v_lshrrev_b32", V(9), 1, V(9)))
    a(salu("s_lshl_b32", S(sLB), S(sWAVE), 15))
    a(valu("v_add_u32", V(8), S(sLB), V(8)))
    a(valu("v_lshl_add_u32", V(vTR), V(9), 6, V(8)))
    a(valu("v_xor_b32", V(9), 1, V(9)))
    a(valu("v_lshl_add_u32", V(vTR + 1), V(9), 6, V(8)))
    a(raw("s_waitcnt lgkmcnt(0)"))
    a(salu("s_lshl_b32", S(sT0), S(sM), 19))
    a(salu("s_lshl_b32", S(sT1), S(sWAVE), 16))
    a(salu("s_add_u32", S(sT0), S(sT0), S(sT1)))
    a(salu("s_add_u32", S(8), S(46), S(sT0)))
    a(salu("s_addc_u32", S(9), S(47), 0))
    a(salu("s_sub_u32", S(10), 14680064, S(sT0)))
    a(salu("s_mov_b32", S(11), 0x20000))
    a(salu("s_mul_i32", S(sT0), S(sWAVE), 1024 * 1152))
    a(salu("s_lshl_b32", S(sT1), S(sN), 7))
    a(salu("s_add_u32", S(sT0), S(sT0), S(sT1)))
    a(salu("s_add_u32", S(12), S(4), S(sT0)))
    a(salu("s_addc_u32", S(13), S(5), 0))
    a(salu("s_sub_u32", S(14), 4096 * 1152, S(sT0)))
    a(salu("s_mov_b32", S(15), 0x20000))
    a(salu("s_mul_i32", S(sT0), S(sM), 64 * 1152))
    a(salu("s_add_u32", S(sT0), S(sT0), S(sT1)))
    a(salu("s_add_u32", S(16), S(6), S(sT0)))
    a(salu("s_addc_u32", S(17), S(7), 0))
    a(salu("s_sub_u32", S(18), 1792 * 1152, S(sT0)))
    a(salu("s_mov_b32", S(19), 0x20000))
    a(salu("s_mov_b32", S(sOOFF), 0))
    a(salu("s_mov_b32", S(sWOFF), 0))
    return L

def loads(k, cfg):
    L = []
    if not cfg.no_w:
        L.append(salu("s_add_u32", "m0", S(sLB), (k % RING) * 2048))
        d = dma(V(vWA), S(sW, 4), S(sWOFF), 0, tag=('w', k), flags=cfg.w_flags); d.cost = 8; L.append(d)
        d = dma(V(vWA + 1), S(sW, 4), S(sWOFF), 1024, tag=('w', k), flags=cfg.w_flags); d.cost = 8; L.append(d)
        L.append(salu("s_add_u32", S(sWOFF), S(sWOFF), 16 * 1152))
    if not cfg.no_o:
        for ti in range(2):
            L.append(bload("buffer_load_dwordx4", V(vOR + (k % RING) * 8 + 4 * ti, 4), V(vOA + ti), S(sO, 4), S(sOOFF), imm=(k % 4) * 1024, flags=cfg.o_flags))
        if k % 4 == 3:
            L.append(salu("s_add_u32", S(sOOFF), S(sOOFF), 4096))
    return L

def tr_reads(k, cfg):
    L = []
    first = True
    for ni in range(2):
        for t in range(2):
            r = ds_tr(V(vAF + (k % 2) * 8 + ni * 4 + 2 * t, 2), V(vTR + ni), (k % RING) * 2048 + t * 512)
            if first and not cfg.no_w: r.wait_tags = [('w', k)]
            first = False
            L.append(r)
    return L

def mfmas(k, cfg):
    L = []
    for ti in range(2):
        for ni in range(2):
            d = V(vACC + (ni * 2 + ti) * 16, 16)
            L.append(mfma(d, V(vAF + (k % 2) * 8 + ni * 4, 4), V(vOR + (k % RING) * 8 + 4 * ti, 4), 0 if k == 0 else d))
    return L

def step(k, cfg):
    from gen_a import spread
    mf = mfmas(k, cfg)
    ld = loads(k + cfg.P, cfg) if k + cfg.P < 64 else []
    tr = tr_reads(k + 1, cfg) if k + 1 < 64 else []
    if cfg.no_mfma:
        mf = [valu("v_mov_b32", V(12), V(vOR + (k % RING) * 8)), valu("v_mov_b32", V(13), V(vOR + (k % RING) * 8 + 4)), valu("v_mov_b32", V(14), V(vAF + (k % 2) * 8)), valu("v_mov_b32", V(15), V(vAF + (k % 2) * 8 + 6))]
        return mf + tr + ld
    return spread(mf, [(tr, 0, 1), (ld, 1, 3)])

def finish(cfg):
    L = []; a = L.append
    a(valu("v_and_b32", V(8), 31, V(0)))
    a(valu("v_mul_u32_u24", V(8), 272, V(8)))
    a(valu("v_lshrrev_b32", V(9), 5, V(0)))
    a(valu("v_lshl_add_u32", V(8), V(9), 5, V(8)))
    a(valu("v_add_u32", V(8), S(sLB), V(8)))
    for ni in range(2):
        for ti in range(2):
            for hf in range(2):
                for q4 in range(2):
                    r = vACC + (ni * 2 + ti) * 16 + 8 * hf + 4 * q4
                    a(ds_write("ds_write_b128", V(8), V(r, 4), off=ti * 32 * 272 + (32 * ni + 16 * hf) * 4 + q4 * 16))
    a(barrier())
    a(valu("v_lshrrev_b32", V(9), 3, V(0)))
    a(salu("s_lshl_b32", S(sT0), S(sWAVE), 4))
    a(valu("v_add_u32", V(9), S(sT0), V(9)))
    a(valu("v_mul_u32_u24", V(8), 272, V(9)))
    a(valu("v_and_b32", V(10), 7, V(0)))
    a(valu("v_lshl_add_u32", V(8), V(10), 5, V(8)))
    a(valu("v_mul_u32_u24", V(11), 1152, V(9)))
    a(valu("v_lshl_add_u32", V(11), V(10), 4, V(11)))
    a(valu("v_add_u32", V(12), 8 * 1152, V(11)))
    a(valu("v_add_u32", V(13), 65536, V(8)))
    base = 32
    for i in range(2):
        for p in range(4):
            for q4 in range(2):
                a(ds_b128(V(base + (i * 4 + p) * 8 + 4 * q4, 4), V(8 if p < 2 else 13), (p % 2) * 32768 + i * 8 * 272 + q4 * 16))
    for i in range(2):
        b = base + i * 32
        for e in range(8):
            a(valu("v_add_f32", V(b + e), V(b + e), V(b + 8 + e)))
        for e in range(8):
            a(valu("v_add_f32", V(b + 16 + e), V(b + 16 + e), V(b + 24 + e)))
        for e in range(8):
            a(valu("v_add_f32", V(b + e), V(b + e), V(b + 16 + e)))
        for e in range(4):
            a(valu("v_cvt_pk_bf16_f32", V(100 + 4 * i + e), V(b + 2 * e), V(b + 2 * e + 1)))
        a(bstore("buffer_store_dwordx4", V(100 + 4 * i, 4), V(11 + i), S(sOUT, 4), 0))
    a(raw("s_waitcnt vmcnt(0)"))
    return L

def stamp(n):
    return raw(f"s_memtime s[{48 + 2*n}:{48 + 2*n + 1}]\n  s_memrealtime s[{74 + 2*n}:{74 + 2*n + 1}]")

def build(cfg):
    out = []
    su = setup(cfg)
    from gen_a import spread
    pro = []
    for k in range(cfg.P): pro += loads(k, cfg)
    pro += tr_reads(0, cfg)
    steps = [step(k, cfg) for k in range(64)]
    fin = finish(cfg)
    stream = su + pro + sum(steps, []) + fin
    n = analyze(stream)
    merge_into(sum(steps[16:32], []), [sum(steps[32:48], [])])
    out += emit(su)
    if cfg.stamps: out += emit([stamp(1)])
    out += emit(pro)
    if cfg.stamps: out += emit([stamp(2)])
    for k in range(16): out += emit(steps[k])
    if cfg.stamps: out += emit([stamp(3)])
    out += [f"  s_mov_b32 s{sCNT}, 0", "B_LOOP:"]
    for k in range(16, 32): out += emit(steps[k])
    out += [f"  s_add_u32 s{sCNT}, s{sCNT}, 1", f"  s_cmp_lt_u32 s{sCNT}, 2", "  s_cbranch_scc1 B_LOOP"]
    if cfg.stamps: out += emit([stamp(4)])
    for k in range(48, 64): out += emit(steps[k])
    if cfg.stamps: out += emit([stamp(5)])
    out += emit(fin)
    if cfg.stamps:
        out += ["  s_memrealtime s[86:87]", "  s_memtime s[60:61]", "  s_waitcnt lgkmcnt(0)",
                "  s_add_u32 s8, s46, 0x2100000", "  s_addc_u32 s9, s47, 0", "  s_mov_b32 s10, 0x100000", "  s_mov_b32 s11, 0x20000",
                "  s_lshl_b32 s3, s2, 2", f"  s_add_u32 s3, s3, s{sWAVE}", "  s_lshl_b32 s3, s3, 7"]
        for i in range(13): out.append(f"  v_mov_b32 v{16+i}, s{48+2*i}")
        for i in range(13): out.append(f"  v_mov_b32 v{32+i}, s{74+2*i}")
        out += ["  v_mov_b32 v48, s3", "  v_cmp_eq_u32 vcc, 0, v0", "  s_and_saveexec_b64 s[4:5], vcc"]
        for i in range(8): out.append(f"  buffer_store_dwordx4 v[{16+4*i}:{19+4*i}], v48, s[8:11], 0 offen offset:{16*i}")
        out.append("  s_waitcnt vmcnt(0)")
    out += ["B_end:", "  s_endpgm"]
    return out, n

if __name__ == "__main__":
    o, n = build(CfgB())
    print(n, len(o))
    print("\n".join(o[:400]))
```

```python
import sys
HEAD = open("standalone__mha_block_cached__near_ridge.s.ref").read().split("; Override launch geometry")[0]
KN = "standalone__mha_block_cached__near_ridge"

def kdesc(name, vgpr, acc):
    return f""".p2align 6
.amdhsa_kernel {name}
  .amdhsa_next_free_vgpr {vgpr}
  .amdhsa_next_free_sgpr 102
  .amdhsa_accum_offset {acc}
  .amdhsa_group_segment_fixed_size 0
  .amdhsa_kernarg_size 64
  .amdhsa_user_sgpr_count 2
  .amdhsa_user_sgpr_kernarg_segment_ptr 1
  .amdhsa_system_sgpr_workgroup_id_x 1
.end_amdhsa_kernel
"""

def make(kernels):
    s = HEAD
    if len(kernels) == 1:
        l, g, b, lds, *_ = kernels[0]
        s += f"; @launch grid=({g},1,1) block=({b},1,1) lds={lds}\n"
    else:
        for (l, g, b, lds, *_) in kernels:
            s += f"; @launch kernel={l} grid=({g},1,1) block=({b},1,1) lds={lds}\n"
    s += '.amdgcn_target "amdgcn-amd-amdhsa--gfx950"\n.text\n'
    for (l, g, b, lds, vg, acc, body) in kernels:
        s += f".globl {l}\n.p2align 8\n.type {l},@function\n{l}:\n" + "\n".join(body) + "\n"
    s += '.section .rodata,"a"\n'
    for (l, g, b, lds, vg, acc, body) in kernels:
        s += kdesc(l, vg, acc)
    return s
```

```python
import sys
import gen_a, gen_b
from mk import *
ca = gen_a.Cfg(); cb = gen_b.CfgB()
for kv in sys.argv[2:]:
    k, v = kv.split("=")
    if k.startswith("a."): setattr(ca, k[2:], eval(v))
    elif k.startswith("b."): setattr(cb, k[2:], eval(v))
oa, na = gen_a.build(ca)
ob, nb = gen_b.build(cb)
print("nops", na, nb, "lines", len(oa), len(ob))
open(sys.argv[1], "w").write(make([(KN + "_kernel", 256, 256, 163840, 512, 256, oa), ("mha_outproj_kernel", 256, 256, 131072, 256, 256, ob)]))
```
